```python
import torch

def _softmax(x, axis=-1):
    return torch.softmax(x, dim=axis)

def _gelu(x):
    return torch.nn.functional.gelu(x, approximate='tanh')

def _silu(x):
    return torch.nn.functional.silu(x)

def _sigmoid(x):
    return torch.sigmoid(x)

def _layernorm(x, axis=-1, eps=1e-05):
    m = x.mean(dim=axis, keepdim=True)
    v = x.var(dim=axis, keepdim=True, unbiased=False)
    return (x - m) / torch.sqrt(v + eps)

def _scatter_add(tgt, idx, src, axis=0):
    return tgt.clone().index_add_(axis, idx, src)

def _segment_sum(src, seg, n):
    out = torch.zeros((n,) + src.shape[1:], dtype=src.dtype)
    return out.index_add_(0, seg, src)

def _pad(x, pw):
    flat = tuple((v for pair in reversed(pw) for v in pair))
    return torch.nn.functional.pad(x, flat)
kernel_name = 'gated_mix__grouped_kv_mqa__mixer_gmlp__prompt'

def setup_inputs():

    _w = lambda a: (lambda t: t.to(torch.bfloat16) if t.is_floating_point() else t)(torch.as_tensor(a))

    def _A_setup():
        B, S, D, H = (1, 2048, 1024, 32)
        Dh = D // H
        return {'x': _w((lambda *s: torch.randn(*s, dtype=torch.bfloat16) * 0.05)(B, S, D)), 'wq': _w((lambda *s: torch.randn(*s, dtype=torch.bfloat16) * 0.8)(D, H * Dh)), 'wk': _w((lambda *s: torch.randn(*s, dtype=torch.bfloat16) * 0.8)(D, Dh)), 'wv': _w((lambda *s: torch.randn(*s, dtype=torch.bfloat16) * 0.2)(D, Dh)), 'wo': _w((lambda *s: torch.randn(*s, dtype=torch.bfloat16) * 0.2)(H * Dh, D))}
    _A_in = _A_setup()

    def _B_setup():
        B, S, D, F = (1, 2048, 1024, 3584)
        Fh = F // 2
        return {'x': _w((lambda *s: torch.randn(*s, dtype=torch.bfloat16) * 0.05)(B, S, D)), 'w_in': _w((lambda *s: torch.randn(*s, dtype=torch.bfloat16) * 0.4)(D, 2 * Fh)), 'w_sp': _w(0.01 * (lambda *s: torch.randn(*s, dtype=torch.bfloat16) * 0.4)(S, S)), 'b_sp': _w(1.0 + 0.01 * (lambda *s: torch.randn(*s, dtype=torch.bfloat16) * 0.05)(S)), 'w_out': _w((lambda *s: torch.randn(*s, dtype=torch.bfloat16) * 0.05)(Fh, D))}
    _B_in = _B_setup()
    return {'A_x': _A_in['x'], 'A_wq': _A_in['wq'], 'A_wk': _A_in['wk'], 'A_wv': _A_in['wv'], 'A_wo': _A_in['wo'], 'B_x': _B_in['x'], 'B_w_in': _B_in['w_in'], 'B_w_sp': _B_in['w_sp'], 'B_b_sp': _B_in['b_sp'], 'B_w_out': _B_in['w_out'], 'gate_w': _w((lambda *s: torch.randn(*s, dtype=torch.bfloat16) * 0.05)(1024) * 16.0)}

def reference(A_x, A_wq, A_wk, A_wv, A_wo, B_x, B_w_in, B_w_sp, B_b_sp, B_w_out, gate_w):

    def _A_ref(x, wq, wk, wv, wo):
        B, S, D = x.shape
        H = 32
        Dh = D // H
        q = (lambda x, *d: x.permute(*d))((x @ wq).reshape(B, S, H, Dh), 0, 2, 1, 3)
        k = x @ wk
        v = x @ wv
        scores = torch.einsum('bhqd,bkd->bhqk', q, k) * Dh ** (-0.5)
        p = _softmax(scores, axis=-1)
        o = torch.einsum('bhqk,bkd->bhqd', p, v)
        return (lambda x, *d: x.permute(*d))(o, 0, 2, 1, 3).reshape(B, S, H * Dh) @ wo

    def _B_ref(x, w_in, w_sp, b_sp, w_out):
        B, S, D = x.shape
        F = w_in.shape[-1]
        Fh = F // 2
        z = _gelu(torch.einsum('bsd,df->bsf', x, w_in))
        z1 = z[..., :Fh].clone()
        z2 = _layernorm(z[..., Fh:], axis=-1)
        g = torch.einsum('ts,bsf->btf', w_sp, z2) + b_sp[None, :, None]
        return torch.einsum('bsf,fd->bsd', z1 * g, w_out)
    x = A_x
    g = _sigmoid((x * gate_w).sum(-1, keepdims=True))
    a = _A_ref(x, A_wq, A_wk, A_wv, A_wo)
    b = _B_ref(x, B_w_in, B_w_sp, B_b_sp, B_w_out)
    return g * a + (1 - g) * b
```

```python
import re

TRANS = ("v_exp_f32", "v_log_f32", "v_rcp_f32", "v_rsq_f32", "v_sqrt_f32", "v_sin_f32", "v_cos_f32")
PASSES = {"v_mfma_f32_16x16x32_bf16": 4, "v_mfma_f32_32x32x16_bf16": 8,
          "v_smfmac_f32_16x16x64_bf16": 4, "v_smfmac_f32_32x32x32_bf16": 8}
_REG = re.compile(r"^-?\|?(?:abs\()?([vsa])(?:(\d+)|\[(\d+):(\d+)\])\)?\|?$")


def regs(op):
    op = op.strip()
    if op in ("vcc", "exec", "m0"):
        return {op}
    if op in ("vcc_lo", "vcc_hi"):
        return {"vcc"}
    if op in ("exec_lo", "exec_hi"):
        return {"exec"}
    m = _REG.match(op)
    if not m:
        return set()
    if m.group(2) is not None:
        return {(m.group(1), int(m.group(2)))}
    return {(m.group(1), i) for i in range(int(m.group(3)), int(m.group(4)) + 1)}


class Ins:
    def __init__(self, text):
        self.text = text
        t = text.split(";")[0].strip()
        self.label = t.endswith(":")
        self.dir = t.startswith(".") and not self.label
        self.mn = ""
        self.w, self.r = set(), set()
        self.kind = "other"
        self.a = self.b = self.c = set()
        self.passes = 0
        self.nops = 1
        if not t or self.label or self.dir:
            self.nops = 0
            return
        parts = t.split(None, 1)
        mn = self.mn = parts[0]
        rest = parts[1] if len(parts) > 1 else ""
        ops = [o.strip() for o in rest.split(",")]
        last = ops[-1].split() if ops else []
        mods = last[1:]
        if last:
            ops[-1] = last[0]
        self.mods = mods
        R = [regs(o) for o in ops]
        U = lambda l: set().union(*l) if l else set()
        base = mn.replace("_e32", "").replace("_e64", "").replace("_dpp", "").replace("_sdwa", "")
        self.dpp = mn.endswith("_dpp") or any(m.startswith(("row_", "quad_perm", "wave_")) for m in mods)
        if mn == "s_nop":
            self.nops = int(ops[0], 0) + 1
        elif base in PASSES:
            self.kind = "mfma"
            self.passes = PASSES[base]
            self.w = R[0]
            if "smfmac" in base:
                self.a, self.b, self.c = R[1] | R[3], R[2], R[0]
            else:
                self.a, self.b, self.c = R[1], R[2], R[3]
            self.r = self.a | self.b | self.c
        elif mn.startswith("v_"):
            self.kind = "trans" if base in TRANS else "valu"
            if base.startswith("v_cmp"):
                self.w, self.r = R[0], U(R[1:])
            elif base.startswith("v_permlane") or base == "v_swap_b32":
                self.w = self.r = R[0] | R[1]
            elif base in ("v_add_co_u32", "v_addc_co_u32", "v_sub_co_u32"):
                self.w, self.r = R[0] | R[1], U(R[2:])
            else:
                self.w, self.r = R[0], U(R[1:])
                if base.startswith(("v_fmac", "v_dot2c", "v_pk_fmac", "v_writelane")) or self.dpp:
                    self.r = self.r | R[0]
        elif mn.startswith(("buffer_load", "global_load")):
            if "lds" in mods or "_lds_" in mn:
                self.kind = "dma"
                self.r = U(R) | {"m0"}
            else:
                self.kind = "vload"
                self.w, self.r = R[0], U(R[1:])
        elif mn.startswith(("buffer_store", "global_store", "buffer_atomic", "global_atomic")):
            self.kind = "vstore"
            self.r = U(R)
            self.data = R[0] if mn.startswith("buffer") else R[1]
            self.wide = mn.endswith(("x3", "x4"))
        elif mn.startswith(("ds_read", "ds_bpermute", "ds_swizzle", "ds_permute")):
            self.kind = "dsr"
            self.w, self.r = R[0], U(R[1:])
        elif mn.startswith("ds_"):
            self.kind = "dsw"
            self.r = U(R)
        elif mn.startswith(("s_load", "s_memtime", "s_memrealtime")):
            self.kind = "smem"
            self.w, self.r = R[0], U(R[1:])
        elif mn.startswith(("s_cmp", "s_cbranch", "s_branch", "s_waitcnt", "s_barrier", "s_endpgm", "s_setprio", "s_sleep", "buffer_inv", "buffer_wbl2")):
            self.r = U(R)
        elif mn.startswith("s_"):
            self.kind = "salu"
            self.w, self.r = R[0], U(R[1:])


def need(p, c):
    n = 0
    valu = lambda x: x.kind in ("valu", "trans")
    vonly = lambda s: {x for x in s if isinstance(x, tuple) and x[0] in "va"}
    sonly = lambda s: {x for x in s if x == "vcc" or (isinstance(x, tuple) and x[0] == "s")}
    if valu(p):
        pv, ps = vonly(p.w), sonly(p.w)
        if c.kind == "mfma" and pv & c.r:
            n = max(n, 2)
        if valu(c) and pv & c.r:
            if p.kind == "trans" and c.kind != "trans":
                n = max(n, 1)
            if c.mn.startswith("v_permlane") or c.dpp:
                n = max(n, 2)
            if c.mn.startswith(("v_readfirstlane", "v_readlane")):
                n = max(n, 1)
        if p.kind == "trans" and c.kind in ("vstore", "dsw") and pv & c.r:
            n = max(n, 1)
        if ps & c.r:
            if valu(c):
                n = max(n, 4 if c.mn.startswith(("v_readlane", "v_writelane")) else 2)
            if c.kind in ("vload", "vstore", "dma"):
                n = max(n, 5)
            if c.kind in ("salu", "other", "smem"):
                n = max(n, 1)
        if "exec" in p.w:
            n = max(n, 5)
    if p.kind == "mfma":
        big = {4: 8, 8: 12}[p.passes]
        if c.kind == "mfma":
            if p.w & (c.a | c.b):
                n = max(n, big)
            if p.w & c.c and not (p.w == c.c and p.passes == c.passes):
                n = max(n, big - 2)
            if p.w & c.w and not (p.w == c.w and p.passes == c.passes):
                n = max(n, big - 2)
        else:
            if p.w & (c.r | c.w):
                n = max(n, big)
            if valu(c) and p.c & c.w:
                n = max(n, p.passes - 1)
    if p.kind == "salu" and "m0" in p.w and c.kind == "dma":
        n = max(n, 1)
    if p.kind == "vstore" and p.wide and p.data & c.w:
        n = max(n, 2)
    return n


def fix_hazards(lines, window=14):
    L = [Ins(x) for x in lines]
    labels = {i.text.split(";")[0].strip()[:-1]: k for k, i in enumerate(L) if i.label}
    out = []

    def short(hist, c):
        d, dt, worst = 0, 0, 0
        for p in reversed(hist):
            if d >= window:
                break
            if p.nops:
                worst = max(worst, need(p, c) - (dt if p.kind == "mfma" else d))
            d += p.nops
            dt += 2 if p.kind in ("trans", "mfma") else p.nops
        return worst

    for k, c in enumerate(L):
        if c.nops:
            s = short(out, c)
            if s > 0:
                out.append(Ins(f"    s_nop {s-1}"))
        if c.mn.startswith(("s_cbranch", "s_branch")):
            tgt = c.text.split(";")[0].split()[-1]
            hist = out + [c]
            s, d = 0, 0
            for t in L[labels[tgt]:]:
                if d >= window:
                    break
                if t.nops:
                    s = max(s, short(hist, t) - d)
                    d += t.nops
                if t.mn in ("s_branch", "s_endpgm"):
                    break
            if s > 0:
                out.append(Ins(f"    s_nop {s-1}"))
        out.append(c)
    return [i.text for i in out]


def add_lgkm(pre, body):
    def walk(q, seq, record):
        for k, t in enumerate(seq):
            i = Ins(t)
            if i.mn == "s_waitcnt" and "lgkmcnt" in t:
                n = int(re.search(r"lgkmcnt\((\d+)\)", t).group(1))
                del q[:max(0, len(q) - n)]
            use = i.r | i.w
            hit = [x for x, d in enumerate(q) if d & use]
            if hit:
                n = len(q) - 1 - max(hit)
                if record is not None:
                    record[k] = min(record.get(k, 99), n)
                del q[:max(hit) + 1]
            if i.kind == "dsr":
                q.append(i.w)
            elif i.kind == "dsw":
                q.append(set())
        return q
    rec = {}
    q = walk([], pre, None)
    q = walk(q, body, rec)
    q = walk(q, body, rec)
    out = []
    for k, t in enumerate(body):
        if k in rec:
            out.append(f"    s_waitcnt lgkmcnt({min(rec[k], 15)})")
        out.append(t)
    return out


class Asm:
    def __init__(self):
        self.L = []

    def __call__(self, s):
        for l in s.split("\n"):
            l = l.strip()
            if l:
                self.L.append(l if l.endswith(":") else "    " + l)

    def ext(self, ls):
        self.L.extend(ls)


def weave(main, fill):
    out = []
    for k, m in enumerate(main):
        out.append(m)
        out += fill.get(k, [])
    return out
```

```python
from asmlib import *
import struct

NAME = "gated_mix__grouped_kv_mqa__mixer_gmlp__prompt"
KA = dict(x=0, wq=8, wk=16, wv=24, wo=32, win=48, wsp=56, bsp=64, wout=72, gw=80, out=88, dbg=96, ws=104)
WS_Q = 0
WS_KV = 4 << 20
WS_STATS = WS_KV + (256 << 10)
WS_GATE = WS_STATS + (256 << 10)
WS_Z1 = 5 << 20
WS_Z2 = 13 << 20
WS_ACT = 21 << 20
WS_SIZE = 0x10000000


def f2u(x):
    return "0x%08x" % struct.unpack("<I", struct.pack("<f", x))[0]


def srd(a, s, ptr, nbytes):
    a(f"s_mov_b32 s{s}, s{ptr}\ns_mov_b32 s{s+1}, s{ptr+1}\ns_mov_b32 s{s+2}, {nbytes}\ns_mov_b32 s{s+3}, 0x00020000")


def ring_next(s, step, lo, hi):
    return [f"    s_add_u32 s{s}, s{s}, {step}", f"    s_cmp_eq_u32 s{s}, {hi}", f"    s_cselect_b32 s{s}, {lo}, s{s}"]


def m16(d, x, y, c=None):
    c = f"v[{d}:{d+3}]" if c is None else c
    return f"    v_mfma_f32_16x16x32_bf16 v[{d}:{d+3}], v[{x}:{x+3}], v[{y}:{y+3}], {c}"


def m32(d, x, y, c=None):
    c = f"v[{d}:{d+15}]" if c is None else c
    return f"    v_mfma_f32_32x32x16_bf16 v[{d}:{d+15}], v[{x}:{x+3}], v[{y}:{y+3}], {c}"


def s32(d, x, y, idx):
    return f"    v_smfmac_f32_32x32x32_bf16 v[{d}:{d+15}], v[{x}:{x+3}], v[{y}:{y+7}], v{idx}"


def s16(d, x, y, idx):
    return f"    v_smfmac_f32_16x16x64_bf16 v[{d}:{d+3}], v[{x}:{x+3}], v[{y}:{y+7}], v{idx}"


def kernel_head(name):
    return [f".globl {name}", ".p2align 8", f".type {name},@function", f"{name}:"]


def kernel_desc(name, vgpr=256):
    return f""".amdhsa_kernel {name}
  .amdhsa_next_free_vgpr {vgpr}
  .amdhsa_next_free_sgpr 102
  .amdhsa_accum_offset {vgpr}
  .amdhsa_group_segment_fixed_size 0
  .amdhsa_kernarg_size 112
  .amdhsa_user_sgpr_count 2
  .amdhsa_user_sgpr_kernarg_segment_ptr 1
  .amdhsa_system_sgpr_workgroup_id_x 1
  .amdhsa_float_denorm_mode_32 3
.end_amdhsa_kernel""".split("\n")


def decode_wg(a, end, rbits_from_xcd=1):
    a(f"s_cmp_ge_u32 s2, 256\ns_cbranch_scc1 {end}")
    a("v_lshrrev_b32 v1, 6, v0\nv_and_b32 v0, 63, v0\nv_readfirstlane_b32 s5, v1")
    if rbits_from_xcd == 1:
        a("s_and_b32 s3, s2, 1\ns_lshl_b32 s3, s3, 3\ns_bfe_u32 s6, s2, 0x30003\ns_add_u32 s3, s3, s6")
        a("s_bfe_u32 s4, s2, 0x20001\ns_lshl_b32 s4, s4, 2\ns_lshr_b32 s6, s2, 6\ns_add_u32 s4, s4, s6")
    else:
        a("s_and_b32 s3, s2, 3\ns_lshl_b32 s3, s3, 2\ns_bfe_u32 s6, s2, 0x20003\ns_add_u32 s3, s3, s6")
        a("s_bfe_u32 s4, s2, 0x10002\ns_lshl_b32 s4, s4, 3\ns_lshr_b32 s6, s2, 5\ns_add_u32 s4, s4, s6")


def rows_dma_voffs(a, v0, rowbytes, t):
    sh = rowbytes.bit_length() - 1
    a(f"v_lshrrev_b32 v{t}, 3, v0")
    a(f"v_lshrrev_b32 v{t+1}, 2, v{t}")
    for aa in range(2):
        for par in range(2):
            d = v0 + 2 * aa + par
            a(f"v_xor_b32 v{t+2}, {aa}, v{t+1}\nv_lshlrev_b32 v{t+2}, 2, v{t+2}")
            a(f"v_lshl_add_u32 v{t+2}, v{t+1}, 3, v{t+2}")
            a(f"v_and_b32 v{t+3}, 3, v{t}\nv_add3_u32 v{t+2}, v{t+2}, v{t+3}, {16*par}")
            a(f"v_lshlrev_b32 v{d}, {sh}, v{t+2}")
            a(f"v_lshrrev_b32 v{t+2}, 1, v{t}\nv_add_u32 v{t+2}, {4*par}, v{t+2}")
            a(f"v_and_b32 v{t+3}, 7, v0\nv_xor_b32 v{t+2}, v{t+2}, v{t+3}")
            a(f"v_lshl_add_u32 v{d}, v{t+2}, 4, v{d}")


def rows_read_lane(a, d, t):
    a(f"v_and_b32 v{t}, 15, v0\nv_lshrrev_b32 v{t+1}, 1, v{t}\nv_lshrrev_b32 v{d}, 4, v0")
    a(f"v_xor_b32 v{d}, v{d}, v{t+1}\nv_lshlrev_b32 v{d}, 4, v{d}\nv_lshl_add_u32 v{d}, v{t}, 7, v{d}")


def dma(vo, rs, so, m0expr):
    return [f"    {m0expr}", f"    buffer_load_dwordx4 v{vo}, s[{rs}:{rs+3}], s{so} offen lds"]


import os
STAMP = bool(int(os.environ.get("STAMP", "0")))
WS_STAMP = 40 << 20


def stamp(a, k):
    if STAMP:
        a(f"s_memrealtime s[{64+4*k}:{65+4*k}]\ns_memtime s[{66+4*k}:{67+4*k}]\ns_waitcnt lgkmcnt(0)")


def stamp_flush(a, kern, rws, n):
    if STAMP:
        a("s_waitcnt vmcnt(0)")
        stamp(a, n)
        a(f"s_lshl_b32 s60, s2, 3\ns_add_u32 s60, s60, s5\ns_lshl_b32 s60, s60, 7\ns_add_u32 s60, s60, {WS_STAMP + kern * 262144}\nv_mov_b32 v8, 0")
        for k in range(n + 1):
            for r in range(4):
                a(f"v_mov_b32 v{4+r}, s{64+4*k+r}")
            a(f"buffer_store_dwordx4 v[4:7], v8, s[{rws}:{rws+3}], s60 offen offset:{16*k}\ns_nop 1")
```

```python
import os, sys
from common import *

OPT = dict(pf1=1, pf2=1)
for kv_ in os.environ.get("OPT", "").split(","):
    if kv_:
        OPT[kv_.split("=")[0]] = int(kv_.split("=")[1])

WS_FKV = WS_GATE + 8192
WS_FZ = WS_FKV + 2048
WS_FO = WS_FZ + 4096
WS_FU = WS_FO + 4096
LDS = 159744
SPIN = 30000
RX, RQ, RW, RKV, RWS, RSP, RB, RG, RWO, RWU, ROUT, RDBG = 8, 12, 16, 20, 24, 28, 32, 36, 40, 44, 48, 52
sRW, sRX, sCNT, sWW, sWX, sKW, sKX, sPH = 56, 57, 58, 59, 60, 61, 62, 63
sT = 64
sRB4, sNB = 78, 79
sSTAMP = 80
LOG2E = 1.4426950408889634
C1 = -2.0 * 0.7978845608028654 * LOG2E
C2 = C1 * 0.044715
KSCALE = LOG2E / 32 ** 0.5
Q, Z1 = 212, 228


def stamp(a, k):
    if STAMP:
        a(f"s_memrealtime s[{sT+10}:{sT+11}]\ns_memtime s[{sT+12}:{sT+13}]\ns_waitcnt lgkmcnt(0)")
        a(f"s_mov_b32 s{sSTAMP+2*k}, s{sT+10}\ns_mov_b32 s{sSTAMP+2*k+1}, s{sT+12}")


def stamp_flush(a):
    if STAMP:
        a("s_waitcnt vmcnt(0)")
        stamp(a, 10)
        a(f"s_lshl_b32 s{sT}, s2, 3\ns_add_u32 s{sT}, s{sT}, s5\ns_lshl_b32 s{sT}, s{sT}, 7\ns_add_u32 s{sT}, s{sT}, {WS_STAMP}\nv_mov_b32 v8, 0")
        for k in range(11):
            a(f"v_mov_b32 v4, s{sSTAMP+2*k}\nv_mov_b32 v5, s{sSTAMP+2*k+1}")
            a(f"buffer_store_dwordx2 v[4:5], v8, s[{RWS}:{RWS+3}], s{sT} offen offset:{8*k}\ns_nop 1")


_uid = [0]


def poll(a, loads, regs_, tmp):
    u = _uid[0] = _uid[0] + 1
    a(f"s_mov_b32 s{sT+8}, {SPIN}\nF_poll{u}:")
    a.ext(loads)
    a("s_waitcnt vmcnt(0)")
    check_ready(a, regs_, tmp)
    a(f"s_cbranch_vccz F_done{u}\ns_sleep 2\ns_sub_u32 s{sT+8}, s{sT+8}, 1\ns_cmp_lg_u32 s{sT+8}, 0\ns_cbranch_scc1 F_poll{u}\nF_done{u}:")


def check_ready(a, regs_, tmp):
    cur = regs_[0]
    rest = list(regs_[1:])
    while rest:
        if len(rest) >= 2:
            a(f"v_max3_u32 v{tmp}, v{cur}, v{rest[0]}, v{rest[1]}")
            rest = rest[2:]
        else:
            a(f"v_max_u32 v{tmp}, v{cur}, v{rest[0]}")
            rest = rest[1:]
        cur = tmp
    a(f"v_cmp_eq_u32 vcc, -1, v{cur}\ns_nop 4")


def set_flag(a, so, t):
    a(f"v_mov_b32 v{t}, 0\nbuffer_store_dword v{t}, v{t}, s[{RWS}:{RWS+3}], s{so} offen sc1")


def tok32(a, d, t):
    a(f"v_bfe_u32 v{t}, v0, 2, 2\nv_and_b32 v{d}, 1, v{t}\nv_lshlrev_b32 v{d}, 2, v{d}\nv_lshl_add_u32 v{d}, v{t}, 3, v{d}\nv_and_b32 v{t}, 3, v0\nv_add_u32 v{d}, v{d}, v{t}")


XR, XS, XE = 0, 16384, 49152
WR, WS_, WE = 49152, 19456, 146432
ACC1, XF, WF = 4, 148, 180
vXl, vQl, vZl, vX, vQ0, vQ1, vZ = 204, 205, 206, 207, 208, 209, 210


def acc1(j, t):
    return ACC1 + (j * 4 + t) * 4


def p1_wread(j, slot):
    r = WF + 4 * slot
    if j < 2:
        v, o, o2 = (vQ0, vQ1)[j], 0, 2048
    else:
        v, o, o2 = vZ, 32 * (j - 2), 32 * (j - 2) + 3584
    return [f"    ds_read_b64_tr_b16 v[{r}:{r+1}], v{v} offset:{o}", f"    ds_read_b64_tr_b16 v[{r+2}:{r+3}], v{v} offset:{o2}"]


def p1_xread(t, par):
    r = XF + 16 * par + 4 * t
    return [f"    ds_read_b128 v[{r}:{r+3}], v{vX} offset:{2048*t}"]


def p1_head(par):
    sl = lambda j: (9 * par + j) % 6
    return p1_xread(0, par) + p1_wread(0, sl(0)) + p1_xread(1, par) + p1_xread(2, par) + p1_xread(3, par) + p1_wread(1, sl(1)) + p1_wread(2, sl(2))


def p1_step(par):
    sl = lambda j: (9 * par + j) % 6
    mf = [m16(acc1(j, t), WF + 4 * sl(j), XF + 16 * par + 4 * t) for j in range(9) for t in range(4)]
    fill = {}
    for k, r in enumerate(p1_wread(3, sl(3)) + p1_wread(4, sl(4))):
        fill[k] = [r]
    for j in range(5, 9):
        w = p1_wread(j, sl(j))
        fill[4 * (j - 4)], fill[4 * (j - 4) + 1] = [w[0]], [w[1]]
    na = ring_next(sRW, WS_, WR, WE)
    na += [f"    v_add_u32 v{vQ0}, s{sRW}, v{vQl}", f"    v_add_u32 v{vZ}, s{sRW}, v{vZl}", f"    v_xor_b32 v{vQ1}, 32, v{vQ0}"]
    na += [f"    v_xor_b32 v{vX}, 64, v{vX}"] if par == 0 else ring_next(sRX, XS, XR, XE) + [f"    v_add_u32 v{vX}, s{sRX}, v{vXl}"]
    for k in range(5):
        fill[18 + k] = na[2 * k:2 * k + 2]
    fill[23] = ["    s_waitcnt lgkmcnt(0)", "    s_barrier"]
    for k, r in enumerate(p1_head(1 - par)):
        fill[24 + k] = [r]
    return weave(mf, fill)


def gelu4(a, x, t, cst):
    for h in (0, 2):
        a(f"v_pk_mul_f32 v[{t+h}:{t+h+1}], v[{x+h}:{x+h+1}], v[{x+h}:{x+h+1}]")
    for h in (0, 2):
        a(f"v_pk_fma_f32 v[{t+h}:{t+h+1}], v[{t+h}:{t+h+1}], v[{cst+2}:{cst+3}], v[{cst}:{cst+1}]")
    for h in (0, 2):
        a(f"v_pk_mul_f32 v[{t+h}:{t+h+1}], v[{t+h}:{t+h+1}], v[{x+h}:{x+h+1}]")
    for r in range(4):
        a(f"v_exp_f32 v{t+r}, v{t+r}")
    for h in (0, 2):
        a(f"v_pk_add_f32 v[{t+h}:{t+h+1}], v[{t+h}:{t+h+1}], v[{cst+4}:{cst+5}]")
    for r in range(4):
        a(f"v_rcp_f32 v{t+r}, v{t+r}")
    for h in (0, 2):
        a(f"v_pk_mul_f32 v[{x+h}:{x+h+1}], v[{x+h}:{x+h+1}], v[{t+h}:{t+h+1}]")


def init_words(a):
    a("v_mov_b32 v4, -1\nv_mov_b32 v5, -1\nv_mov_b32 v6, -1\nv_mov_b32 v7, -1\nv_lshlrev_b32 v1, 4, v0")
    a(f"s_lshl_b32 s{sT}, s3, 4\ns_add_u32 s{sT}, s{sT}, s4")
    a(f"s_lshl_b32 s{sT+1}, s{sT}, 10\ns_add_u32 s{sT+1}, s{sT+1}, {WS_STATS}")
    a(f"buffer_store_dwordx4 v[4:7], v1, s[{RWS}:{RWS+3}], s{sT+1} offen sc1")
    a("v_mov_b32 v1, 0\nv_and_b32 v2, 1, v0\nv_lshlrev_b32 v2, 4, v2")
    a(f"s_lshl_b32 s{sT+1}, s{sT}, 5\ns_add_u32 s{sT+1}, s{sT+1}, {WS_GATE}")
    a(f"buffer_store_dwordx4 v[4:7], v2, s[{RWS}:{RWS+3}], s{sT+1} offen sc1")
    a(f"s_lshl_b32 s{sT+1}, s{sT}, 3\ns_add_u32 s{sT+1}, s{sT+1}, {WS_FKV}")
    a(f"buffer_store_dwordx2 v[4:5], v1, s[{RWS}:{RWS+3}], s{sT+1} offen sc1")
    a(f"s_lshl_b32 s{sT+1}, s{sT}, 4\ns_add_u32 s{sT+1}, s{sT+1}, {WS_FO}\ns_add_u32 s{sT+2}, s{sT+1}, 4096")
    a(f"buffer_store_dwordx4 v[4:7], v1, s[{RWS}:{RWS+3}], s{sT+1} offen sc1")
    a(f"buffer_store_dwordx4 v[4:7], v1, s[{RWS}:{RWS+3}], s{sT+2} offen sc1")
    a(f"s_xor_b32 s{sT+1}, s4, 1\ns_lshl_b32 s{sT+1}, s{sT+1}, 4\ns_add_u32 s{sT+1}, s{sT+1}, s3\ns_lshl_b32 s{sT+1}, s{sT+1}, 4\ns_add_u32 s{sT+1}, s{sT+1}, {WS_FZ}")
    a(f"buffer_store_dwordx4 v[4:7], v1, s[{RWS}:{RWS+3}], s{sT+1} offen sc1")
    a(f"s_lshl_b32 s{sT+1}, s3, 2\nv_mov_b32 v2, 1\nv_lshlrev_b32 v3, 8, v0\ns_waitcnt vmcnt(0)")
    a(f"buffer_atomic_add v2, v3, s[{RDBG}:{RDBG+3}], s{sT+1} offen sc1")


def touch(a, d, t, jobs, idx):
    a(f"s_lshl_b32 s{sT+1}, s{idx}, 13\nv_lshlrev_b32 v{t}, 7, v0\nv_add_u32 v{t}, s{sT+1}, v{t}")
    for k, (rs, first) in enumerate(jobs):
        if first:
            a(f"v_subrev_u32 v{t+1}, {first*8192}, v{t}")
        a(f"buffer_load_dword v{d}, v{t+1 if first else t}, s[{rs}:{rs+3}], 0 offen")


def p1_consumer(a):
    a("s_cmp_lg_u32 s5, 0\ns_cbranch_scc1 F_noinit")
    init_words(a)
    a("F_noinit:")
    a(f"s_lshr_b32 s6, s5, 1\ns_and_b32 s7, s5, 1")
    rows_read_lane(a, vXl, 2)
    a(f"s_lshl_b32 s{sT}, s6, 13\nv_add_u32 v{vXl}, s{sT}, v{vXl}")
    a("v_lshrrev_b32 v1, 2, v0\nv_and_b32 v2, 3, v0")
    a(f"v_bfe_u32 v3, v1, 1, 2\ns_lshl_b32 s{sT}, s7, 1\nv_xor_b32 v3, s{sT}, v3")
    a(f"v_lshlrev_b32 v3, 5, v3\nv_lshl_add_u32 v3, v1, 7, v3\nv_lshl_add_u32 v{vQl}, v2, 3, v3")
    a(f"v_mul_u32_u24 v3, 224, v1\nv_lshl_add_u32 v3, v2, 3, v3")
    a(f"s_mul_i32 s{sT}, s7, 7168\ns_add_u32 s{sT}, s{sT}, 4096\nv_add_u32 v{vZl}, s{sT}, v3")
    a(f"s_mov_b32 s{sRW}, {WR}\ns_mov_b32 s{sRX}, {XR}\ns_mov_b32 s{sCNT}, 16")
    a(f"v_add_u32 v{vQ0}, s{sRW}, v{vQl}\nv_add_u32 v{vZ}, s{sRW}, v{vZl}\nv_xor_b32 v{vQ1}, 32, v{vQ0}\nv_add_u32 v{vX}, s{sRX}, v{vXl}")
    for r in range(144):
        a(f"v_mov_b32 v{ACC1+r}, 0")
    if OPT["pf1"]:
        a(f"s_lshl_b32 s{sT}, s2, 2\ns_add_u32 s{sT}, s{sT}, s5")
        touch(a, 211, 2, [(RW, 0), (RX, 0), (RQ, 512)], sT)
    a("s_barrier")
    stamp(a, 1)
    pre = p1_head(0)
    a.ext(pre)
    a(".p2align 6\nF_c1:")
    a.ext(add_lgkm(pre, p1_step(0) + p1_step(1)))
    a(f"s_sub_u32 s{sCNT}, s{sCNT}, 1\ns_cmp_lg_u32 s{sCNT}, 0\ns_cbranch_scc1 F_c1")
    a("s_waitcnt lgkmcnt(0)")
    stamp(a, 2)
    CST, PK, ST, TT = 148, 156, 164, 180
    for k, c in enumerate((C1, C1, C2, C2, 1.0, 1.0)):
        a(f"v_mov_b32 v{CST+k}, {f2u(c)}")
    for r in range(16):
        a(f"v_mov_b32 v{ST+r}, 0")
    a(f"s_mul_i32 s{sT}, s7, 28672\ns_mul_i32 s{sT+1}, s6, 14336\ns_add_u32 s{sT}, s{sT}, s{sT+1}\nv_lshlrev_b32 v1, 4, v0\nv_add_u32 v1, s{sT}, v1")
    n = 0
    for b in range(2):
        for j in range(7):
            pk = PK + 4 * (n % 2)
            n += 1
            for aa in range(2):
                t = 2 * b + aa
                x = acc1(2 + j, t)
                gelu4(a, x, TT, CST)
                for h in (0, 2):
                    a(f"v_pk_add_f32 v[{ST+2*t}:{ST+2*t+1}], v[{ST+2*t}:{ST+2*t+1}], v[{x+h}:{x+h+1}]")
                    a(f"v_pk_fma_f32 v[{ST+8+2*t}:{ST+9+2*t}], v[{x+h}:{x+h+1}], v[{x+h}:{x+h+1}], v[{ST+8+2*t}:{ST+9+2*t}]")
                    a(f"v_cvt_pk_bf16_f32 v{pk+2*aa+h//2}, v{x+h}, v{x+h+1}")
            a(f"ds_write_b128 v1, v[{pk}:{pk+3}] offset:{7168*b+1024*j}")
    a("s_cmp_eq_u32 s7, 0\ns_cbranch_scc1 F_nostat")
    for k in range(8):
        a(f"v_add_f32 v{ST+2*k}, v{ST+2*k}, v{ST+2*k+1}")
    for s in (0, 8):
        a(f"v_permlane32_swap_b32 v{ST+s}, v{ST+s+4}\nv_permlane32_swap_b32 v{ST+s+2}, v{ST+s+6}")
        a(f"v_add_f32 v{ST+s}, v{ST+s}, v{ST+s+4}\nv_add_f32 v{ST+s+2}, v{ST+s+2}, v{ST+s+6}")
        a(f"v_permlane16_swap_b32 v{ST+s}, v{ST+s+2}")
        a(f"v_add_f32 v{TT+s//8}, v{ST+s}, v{ST+s+2}\nv_min_u32 v{TT+s//8}, -2, v{TT+s//8}")
    a(f"s_lshl_b32 s{sT}, s3, 4\ns_add_u32 s{sT}, s{sT}, s4\ns_lshl_b32 s{sT}, s{sT}, 10\ns_lshl_b32 s{sT+1}, s6, 9")
    a(f"s_add_u32 s{sT}, s{sT}, s{sT+1}\ns_add_u32 s{sT}, s{sT}, {WS_STATS}\nv_lshlrev_b32 v2, 3, v0")
    a(f"buffer_store_dwordx2 v[{TT}:{TT+1}], v2, s[{RWS}:{RWS+3}], s{sT} offen sc1")
    a("F_nostat:")
    for t in range(4):
        for j in range(2):
            for h in range(2):
                a(f"v_cvt_pk_bf16_f32 v{Q+4*t+2*j+h}, v{acc1(j,t)+2*h}, v{acc1(j,t)+2*h+1}")
    for b in range(2):
        for r in range(4):
            a(f"v_permlane16_swap_b32 v{Q+8*b+r}, v{Q+8*b+4+r}")


def p1_producer(a, p):
    VO = 10
    vKX, vKXl, vKW, vKWl, KX, KW, KACC = 30, 31, 32, 33, 36, 40, 44
    kv = p >= 2
    if p < 2:
        if p == 0:
            a(f"s_mov_b32 s{sT}, s4\ns_mul_i32 s{sT+1}, s4, 224")
        else:
            a(f"s_xor_b32 s{sT}, s4, 1\ns_mul_i32 s{sT+1}, s{sT}, 224\ns_add_u32 s{sT+1}, s{sT+1}, 3584")
        a(f"s_and_b32 s{sT}, s{sT}, 1\ns_lshl_b32 s{sT}, s{sT}, 1\ns_movk_i32 s{sT+2}, 7168")
        for i in range(7):
            a(f"v_add_u32 v2, {64*i}, v0\nv_mul_u32_u24 v3, 4682, v2\nv_lshrrev_b32 v3, 16, v3")
            a(f"v_mul_u32_u24 v4, 14, v3\nv_sub_u32 v4, v2, v4\nv_add_u32 v4, s{sT}, v4")
            a("v_subrev_u32 v5, 14, v4\nv_min_u32 v4, v4, v5")
            a("v_bfe_u32 v5, v3, 2, 2\nv_lshrrev_b32 v6, 4, v3\nv_and_b32 v3, 3, v3\nv_lshl_add_u32 v3, v5, 3, v3\nv_lshl_add_u32 v3, v6, 2, v3")
            a(f"v_mul_lo_u32 v3, v3, s{sT+2}\nv_lshl_add_u32 v3, v4, 4, v3\nv_add_u32 v{VO+i}, s{sT+1}, v3")
    else:
        rows_dma_voffs(a, VO, 2048, 2)
        if p == 2:
            a("v_lshrrev_b32 v2, 3, v0\nv_lshrrev_b32 v3, 2, v2\nv_and_b32 v2, 3, v2\nv_lshl_add_u32 v2, v3, 3, v2\nv_lshlrev_b32 v2, 11, v2")
            a("v_bfe_u32 v3, v0, 1, 2\nv_lshrrev_b32 v4, 4, v0\nv_xor_b32 v3, v3, v4\nv_lshl_add_u32 v2, v3, 5, v2")
            a(f"v_and_b32 v3, 1, v0\nv_lshl_add_u32 v2, v3, 4, v2\ns_lshl_b32 s{sT}, s4, 7\nv_add_u32 v{VO+4}, s{sT}, v2")
            a("v_lshrrev_b32 v3, 1, v0\nv_bfe_u32 v5, v3, 2, 2\nv_lshrrev_b32 v6, 4, v3\nv_and_b32 v3, 3, v3\nv_lshl_add_u32 v3, v5, 3, v3\nv_lshl_add_u32 v3, v6, 2, v3")
            a(f"v_lshlrev_b32 v3, 6, v3\nv_and_b32 v4, 1, v0\nv_lshl_add_u32 v3, v4, 4, v3\ns_and_b32 s{sT}, s4, 1\ns_lshl_b32 s{sT}, s{sT}, 5\nv_add_u32 v{VO+5}, s{sT}, v3")
    a(f"s_mov_b32 s{sWW}, {WR}\ns_mov_b32 s{sWX}, {XR}\ns_mov_b32 s{sKW}, 0\ns_lshl_b32 s{sKX}, s3, 18")
    xi = {0: [], 1: [], 2: [0, 1], 3: [2, 3, 4, 5, 6, 7]}[p]
    n = 6 if p == 3 else 7

    def group(half):
        o = []
        for i in xi:
            i += 8 * half
            o += [f"    s_add_u32 s{sT}, s{sKX}, {65536*(i>>2)}"] + dma(VO + (i & 3), RX, sT, f"s_add_u32 m0, s{sWX}, {1024*i}")
        if p < 2:
            for i in range(7):
                o += dma(VO + i, RW, sKW, f"s_add_u32 m0, s{sWW}, {4096+7168*p+1024*i}")
            o += [f"    s_add_u32 s{sKW}, s{sKW}, {32*7168}"]
        if p == 2:
            for i in range(4):
                o += [f"    s_add_u32 s{sT}, s{sKW}, {(16*(i&1)+4*(i>>1))*2048}"] + dma(VO + 4, RQ, sT, f"s_add_u32 m0, s{sWW}, {1024*i}")
            o += [f"    s_lshr_b32 s{sT}, s{sKW}, 5"] + dma(VO + 5, RKV, sT, f"s_add_u32 m0, s{sWW}, 18432")
            o += [f"    s_add_u32 s{sKW}, s{sKW}, 65536"]
        if p < 3:
            o += ring_next(sWW, WS_, WR, WE)
        if xi and half == 1:
            o += ring_next(sWX, XS, XR, XE) + [f"    s_add_u32 s{sKX}, s{sKX}, 128"]
        return o

    def step(half, issue, later, extra=0):
        allow = later * n + extra
        if half == 0 and xi and later > 0:
            allow -= len(xi)
        a(f"s_waitcnt vmcnt({max(allow, 0)})\ns_barrier")
        if kv:
            if half == 0:
                a(f"v_add_u32 v{vKX}, s{sRX}, v{vKXl}")
                a.ext(ring_next(sRX, XS, XR, XE))
            else:
                a(f"v_xor_b32 v{vKX}, 64, v{vKX}")
            a(f"v_add_u32 v{vKW}, s{sRW}, v{vKWl}")
            a.ext(ring_next(sRW, WS_, WR, WE))
            a(f"ds_read_b128 v[{KX}:{KX+3}], v{vKX}\nds_read_b64_tr_b16 v[{KW}:{KW+1}], v{vKW}\nds_read_b64_tr_b16 v[{KW+2}:{KW+3}], v{vKW} offset:512")
        if issue:
            a.ext(group(half))
        if kv:
            u = _uid[0] = _uid[0] + 1
            a(f"s_waitcnt lgkmcnt(0)\ns_cmp_eq_u32 s{sPH}, 0\ns_cbranch_scc0 F_kv{u}")
            a.ext([m16(KACC, KW, KX)])
            a(f"s_branch F_ke{u}\nF_kv{u}:")
            a.ext([m16(KACC, KX, KW)])
            a(f"F_ke{u}:")

    a(f"s_mov_b32 s{sCNT}, 2\nF_pp{p}:")
    a.ext(group(0) + group(1))
    a(f"s_sub_u32 s{sCNT}, s{sCNT}, 1\ns_cmp_lg_u32 s{sCNT}, 0\ns_cbranch_scc1 F_pp{p}")
    if kv:
        rows_read_lane(a, vKXl, 2)
        a(f"s_lshr_b32 s{sT}, s4, 2\ns_lshl_b32 s{sT}, s{sT}, 12\ns_add_u32 s{sT}, s{sT}, {2048*(p-2)}\nv_add_u32 v{vKXl}, s{sT}, v{vKXl}")
        a(f"v_lshlrev_b32 v{vKWl}, 3, v0\nv_add_u32 v{vKWl}, 18432, v{vKWl}")
        for r in range(4):
            a(f"v_mov_b32 v{KACC+r}, 0")
        a(f"s_mov_b32 s{sRW}, {WR}\ns_mov_b32 s{sRX}, {XR}\ns_bfe_u32 s{sPH}, s4, 0x10001")
    a(f"s_mov_b32 s{sCNT}, 14\nF_pl{p}:")
    step(0, True, 3)
    step(1, True, 3)
    a(f"s_sub_u32 s{sCNT}, s{sCNT}, 1\ns_cmp_lg_u32 s{sCNT}, 0\ns_cbranch_scc1 F_pl{p}")
    ld = [f"    buffer_load_dword v21, v20, s[{RDBG}:{RDBG+3}], 0 offen sc1"]
    if p == 0:
        a("v_and_b32 v20, 15, v0\nv_lshlrev_b32 v20, 2, v20")
        a.ext(ld)
    e = 1 if p == 0 else 0
    step(0, False, 3, e)
    step(1, False, 2, e)
    step(0, False, 1, e)
    step(1, False, 0)
    if p == 0:
        a(f"s_mov_b32 s{sT+8}, {SPIN}\nF_ini:\nv_cmp_ne_u32 vcc, 16, v21\ns_nop 4\ns_cbranch_vccz F_inid")
        a.ext(ld)
        a(f"s_waitcnt vmcnt(0)\ns_sub_u32 s{sT+8}, s{sT+8}, 1\ns_cmp_lg_u32 s{sT+8}, 0\ns_cbranch_scc1 F_ini\nF_inid:")
    if kv:
        aa = p - 2
        a(f"s_lshl_b32 s{sT}, s3, 2\ns_lshr_b32 s{sT+1}, s4, 2\ns_add_u32 s{sT}, s{sT}, s{sT+1}\ns_lshl_b32 s{sT}, s{sT}, 12\ns_add_u32 s{sT}, s{sT}, {WS_KV}")
        a(f"s_and_b32 s{sT+1}, s4, 1\ns_cmp_eq_u32 s{sPH}, 0\ns_cbranch_scc0 F_vst{p}")
        a(f"v_bfe_u32 v2, v0, 2, 2\nv_and_b32 v3, 1, v2\nv_xor_b32 v3, {aa}, v3\nv_lshlrev_b32 v3, 2, v3\nv_lshl_add_u32 v3, v2, 3, v3")
        a("v_and_b32 v2, 3, v0\nv_add_u32 v3, v3, v2\nv_and_b32 v2, 32, v0\nv_add_u32 v3, v3, v2\nv_lshlrev_b32 v3, 4, v3")
        a(f"v_bfe_u32 v2, v0, 4, 1\nv_lshl_add_u32 v3, v2, 10, v3\ns_lshl_b32 s{sT+1}, s{sT+1}, 3\nv_add_u32 v3, s{sT+1}, v3")
        for r in range(4):
            a(f"v_mul_f32 v{KACC+r}, {f2u(KSCALE)}, v{KACC+r}")
        a(f"s_branch F_st{p}\nF_vst{p}:")
        a(f"v_bfe_u32 v2, v0, 3, 1\nv_and_b32 v3, 7, v0\nv_lshl_add_u32 v3, v2, 4, v3\ns_lshl_b32 s{sT+1}, s{sT+1}, 3\nv_add_u32 v3, s{sT+1}, v3")
        a(f"v_bfe_u32 v2, v0, 4, 1\nv_lshl_add_u32 v3, v2, 5, v3\nv_lshlrev_b32 v3, 4, v3\nv_xor_b32 v2, {aa}, v2\nv_lshl_add_u32 v3, v2, 3, v3")
        a("v_lshrrev_b32 v2, 5, v0\nv_lshl_add_u32 v3, v2, 10, v3\nv_add_u32 v3, 2048, v3")
        a(f"F_st{p}:")
        a(f"v_cvt_pk_bf16_f32 v4, v{KACC}, v{KACC+1}\nv_cvt_pk_bf16_f32 v5, v{KACC+2}, v{KACC+3}")
        a(f"buffer_store_dwordx2 v[4:5], v3, s[{RWS}:{RWS+3}], s{sT} offen sc1")
    a("s_barrier")
    if kv:
        a(f"s_lshl_b32 s{sT}, s3, 4\ns_add_u32 s{sT}, s{sT}, s4\ns_lshl_b32 s{sT}, s{sT}, 3\ns_add_u32 s{sT}, s{sT}, {WS_FKV+4*(p-2)}\ns_waitcnt vmcnt(0)")
        set_flag(a, sT, 2)


KVB, KVS, KVE = 61440, 16384, 159744
KV0 = KVB + 2 * KVS
SA, SB, OA, OB, LA, LB = 20, 36, 52, 68, 84, 88
KF, VF, AS, IDX, vKVl, vKV = 92, 108, 124, 128, 129, 130
MA, MB = 132, 148


def kf(u, m):
    return KF + 8 * (u & 1) + 4 * m


def vf(u, j):
    return VF + 8 * (u & 1) + 4 * j


def p2_reads(u):
    o = 4096 * (u & 3)
    return [f"    ds_read_b128 v[{r}:{r+3}], v{vKV} offset:{o+1024*k}" for k, r in enumerate((kf(u, 0), kf(u, 1), vf(u, 0), vf(u, 1)))]


def p2_period(s, sum0, pv1, sum1, qk1, qk2, pv0, x):
    e = [f"    v_exp_f32 v{s+r}, v{s+r}" for r in range(16)]
    return ([e[0], sum0, e[1], pv1, e[2]] + x[0] + [e[3]] + x[1] + [e[4], sum1, e[5]] + x[2] + [qk1, e[6]] + x[3] + [e[7]] + x[4]
            + [e[8], e[9], qk2] + e[10:14] + [pv0, e[14], e[15]])


def p2_tile(u):
    rd = p2_reads(u + 1)
    o = ["    s_barrier"] if u == 3 else []
    adv = [ring_next(sRW, KVS, KVB, KVE), [f"    v_add_u32 v{vKV}, s{sRW}, v{vKVl}"]] if u == 2 else [[], []]
    o += p2_period(SA, s16(LB, AS, SB, IDX), s32(OB, vf(u - 1, 1), SB + 8, IDX), s16(LB, AS, SB + 8, IDX),
                   m32(SB, kf(u, 0), Q + 8, "0"), m32(SB, kf(u, 1), Q + 12), s32(OA, vf(u, 0), SA, IDX),
                   [[rd[0]], [rd[1]], [], [rd[2]], [rd[3]]])
    o += p2_period(SB, s16(LA, AS, SA, IDX), s32(OA, vf(u, 1), SA + 8, IDX), s16(LA, AS, SA + 8, IDX),
                   m32(SA, kf(u + 1, 0), Q, "0"), m32(SA, kf(u + 1, 1), Q + 4), s32(OB, vf(u, 0), SB, IDX),
                   [[], [], ["    s_waitcnt lgkmcnt(0)"], adv[0], adv[1]])
    return o


def p2_slow(a):
    def load(n):
        for k in range(n):
            r = (KF, KF + 4, VF, VF + 4)[k]
            a(f"buffer_load_dwordx4 v[{r}:{r+3}], v{vKVl}, s[{RWS}:{RWS+3}], s{sKW} offen offset:{1024*k} sc1")
        a("s_waitcnt vmcnt(0)")
    a(f"F_slow:\nv_mov_b32 v{MA}, 0xff800000\nv_mov_b32 v{MB}, 0xff800000\ns_mov_b32 s{sKW}, {WS_KV}\nF_slow1:")
    load(2)
    a.ext([m32(SA, KF, Q, "0"), m32(SA, KF + 4, Q + 4), m32(SB, KF, Q + 8, "0"), m32(SB, KF + 4, Q + 12)])
    for s, m in ((SA, MA), (SB, MB)):
        for r in range(0, 16, 2):
            a(f"v_max3_f32 v{m}, v{s+r}, v{s+r+1}, v{m}")
    a(f"s_add_u32 s{sKW}, s{sKW}, 4096\ns_cmp_lt_u32 s{sKW}, {WS_KV+64*4096}\ns_cbranch_scc1 F_slow1")
    for m in (MA, MB):
        a(f"v_mov_b32 v{m+1}, v{m}\nv_permlane32_swap_b32 v{m}, v{m+1}\nv_max_f32 v{m}, v{m}, v{m+1}\nv_sub_f32 v{m}, 0, v{m}")
        for r in range(1, 16):
            a(f"v_mov_b32 v{m+r}, v{m}")
    for r in range(OA, LB + 4):
        a(f"v_mov_b32 v{r}, 0")
    a(f"s_mov_b32 s{sKW}, {WS_KV}\nF_slow2:")
    load(4)
    a.ext([m32(SA, KF, Q, f"v[{MA}:{MA+15}]"), m32(SA, KF + 4, Q + 4), m32(SB, KF, Q + 8, f"v[{MB}:{MB+15}]"), m32(SB, KF + 4, Q + 12)])
    for r in range(32):
        a(f"v_exp_f32 v{SA+r}, v{SA+r}")
    for s, o, l in ((SA, OA, LA), (SB, OB, LB)):
        a.ext([s32(o, VF, s, IDX), s32(o, VF + 4, s + 8, IDX), s16(l, AS, s, IDX), s16(l, AS, s + 8, IDX)])
    a(f"s_add_u32 s{sKW}, s{sKW}, 4096\ns_cmp_lt_u32 s{sKW}, {WS_KV+64*4096}\ns_cbranch_scc1 F_slow2")
    a("s_nop 15\ns_branch F_fin")


def p2_consumer(a):
    a(f"v_lshlrev_b32 v{vKVl}, 4, v0")
    for r in list(range(SB, LB + 4)) + list(range(vf(1, 1), vf(1, 1) + 4)):
        a(f"v_mov_b32 v{r}, 0")
    a(f"v_and_b32 v1, 4, v0\nv_cmp_eq_u32 vcc, 0, v1\nv_mov_b32 v1, 0x3f803f80\nv_mov_b32 v{IDX}, 0xdddd")
    a(f"v_cndmask_b32 v{AS}, 0, v1, vcc\nv_cndmask_b32 v{AS+1}, 0, v1, vcc\nv_xor_b32 v{AS+2}, v{AS}, v1\nv_xor_b32 v{AS+3}, v{AS}, v1")
    a(f"s_mov_b32 s{sRW}, {KV0}\ns_mov_b32 s{sCNT}, 16\nv_add_u32 v{vKV}, {KV0}, v{vKVl}")
    a(f"s_mul_i32 s{sT}, s5, 7168\nv_add_u32 v1, s{sT}, v{vKVl}")
    stamp(a, 3)
    a("s_waitcnt lgkmcnt(0)\ns_barrier")
    stamp(a, 4)
    a.ext(p2_reads(0))
    for j in range(7):
        a(f"ds_read_b128 v[{Z1+4*j}:{Z1+4*j+3}], v1 offset:{1024*j}")
    a("s_waitcnt lgkmcnt(7)")
    a.ext([m32(SA, kf(0, 0), Q, "0"), m32(SA, kf(0, 1), Q + 4)])
    a("s_nop 11\n.p2align 6\nF_c2:")
    a.ext(p2_tile(0) + p2_tile(1) + p2_tile(2) + p2_tile(3))
    a(f"s_sub_u32 s{sCNT}, s{sCNT}, 1\ns_cmp_lg_u32 s{sCNT}, 0\ns_cbranch_scc1 F_c2")
    a.ext([s16(LB, AS, SB, IDX), s32(OB, vf(3, 1), SB + 8, IDX), s16(LB, AS, SB + 8, IDX)])
    stamp(a, 5)
    a("v_mov_b32 v2, 0\nv_mov_b32 v3, 0\nv_mov_b32 v4, 0\nv_mov_b32 v5, 0")
    for r in range(OA, OA + 32, 2):
        a(f"v_pk_fma_f32 v[2:3], v[{r}:{r+1}], v[4:5], v[2:3]")
    a(f"v_add_f32 v2, v2, v3\nv_add_f32 v3, v2, v{LB}\nv_add_f32 v2, v2, v{LA}")
    a(f"v_cmp_nle_f32 vcc, {f2u(2.0**-40)}, v2\ns_mov_b64 s[{sT}:{sT+1}], vcc")
    a(f"v_cmp_nle_f32 vcc, {f2u(2.0**-40)}, v3\ns_or_b64 s[{sT}:{sT+1}], s[{sT}:{sT+1}], vcc")
    a(f"v_cmp_nge_f32 vcc, {f2u(2.0**60)}, v2\ns_or_b64 s[{sT}:{sT+1}], s[{sT}:{sT+1}], vcc")
    a(f"v_cmp_nge_f32 vcc, {f2u(2.0**60)}, v3\ns_or_b64 s[{sT}:{sT+1}], s[{sT}:{sT+1}], vcc")
    a("s_cbranch_scc1 F_slow\nF_fin:")
    a(f"v_rcp_f32 v{LA}, v{LA}\nv_rcp_f32 v{LB}, v{LB}")
    a(f"s_mul_i32 s{sT+2}, s3, 88\ns_lshl_b32 s{sT+3}, s4, 1\ns_add_u32 s{sT+2}, s{sT+2}, s{sT+3}\ns_add_u32 s{sT+2}, s{sT+2}, s7")
    a(f"s_lshl_b32 s{sT+2}, s{sT+2}, 13\ns_lshl_b32 s{sT+3}, s6, 12\ns_add_u32 s{sT+2}, s{sT+2}, s{sT+3}\ns_add_u32 s{sT+2}, s{sT+2}, {WS_ACT}")
    a("v_and_b32 v1, 15, v0\nv_lshlrev_b32 v1, 4, v1\nv_bfe_u32 v2, v0, 4, 1\nv_lshl_add_u32 v1, v2, 10, v1\nv_lshrrev_b32 v2, 5, v0\nv_lshl_add_u32 v1, v2, 8, v1")
    PK = 164
    for b, (o, l) in enumerate(((OA, LA), (OB, LB))):
        for r in range(16):
            a(f"v_mul_f32 v{o+r}, v{o+r}, v{l}")
        for r in range(8):
            a(f"v_cvt_pk_bf16_f32 v{PK+8*b+r}, v{o+2*r}, v{o+2*r+1}")
        for c in range(2):
            a(f"buffer_store_dwordx4 v[{PK+8*b+4*c}:{PK+8*b+4*c+3}], v1, s[{RWS}:{RWS+3}], s{sT+2} offen offset:{2048*b+512*c} sc1")


def p2_producer(a):
    Z, ST, GX, GW = 12, 40, 56, 72
    a(f"s_sub_u32 s6, s5, 4\nv_lshlrev_b32 v1, 4, v0\nv_lshlrev_b32 v2, 5, v0\ns_mov_b32 s{sT}, {WS_FKV}")
    a(f"s_lshl_b32 s{sKW}, s6, 12\ns_add_u32 s{sWW}, s{sKW}, {KV0}\ns_add_u32 s7, s{sKW}, {KVE}\ns_add_u32 s{sWX}, s{sKW}, {KVB}\ns_add_u32 s{sKW}, s{sKW}, {WS_KV}")
    stamp(a, 1)
    poll(a, [f"    buffer_load_dwordx4 v[4:7], v2, s[{RWS}:{RWS+3}], s{sT} offen sc1",
             f"    buffer_load_dwordx4 v[8:11], v2, s[{RWS}:{RWS+3}], s{sT} offen offset:16 sc1"], list(range(4, 12)), 3)
    stamp(a, 2)

    def group():
        o = [f"    s_mov_b32 m0, s{sWW}"]
        for k in range(4):
            o += [f"    buffer_load_dwordx4 v1, s[{RWS}:{RWS+3}], s{sKW} offen offset:{1024*k} sc1 lds"]
        o += [f"    s_add_u32 s{sKW}, s{sKW}, {KVS}", f"    s_add_u32 s{sWW}, s{sWW}, {KVS}", f"    s_cmp_eq_u32 s{sWW}, s7", f"    s_cselect_b32 s{sWW}, s{sWX}, s{sWW}"]
        return o
    a(f"s_mov_b32 s{sCNT}, 6\nF_q0:")
    a.ext(group())
    a(f"s_sub_u32 s{sCNT}, s{sCNT}, 1\ns_cmp_lg_u32 s{sCNT}, 0\ns_cbranch_scc1 F_q0")
    a("v_and_b32 v2, 3, v0\nv_bfe_u32 v3, v0, 2, 2\nv_lshrrev_b32 v4, 4, v0\nv_lshl_add_u32 v2, v3, 4, v2\nv_lshl_add_u32 v2, v4, 2, v2\nv_lshlrev_b32 v2, 4, v2")
    a(f"s_xor_b32 s{sT+6}, s4, 1\ns_lshl_b32 s{sT+6}, s{sT+6}, 6\ns_lshl_b32 s{sT+1}, s3, 2\ns_add_u32 s{sT+6}, s{sT+6}, s{sT+1}\ns_add_u32 s{sT+6}, s{sT+6}, s6")
    a(f"v_and_b32 v3, 31, v0\nv_lshlrev_b32 v3, 3, v3\nv_lshrrev_b32 v4, 5, v0\nv_lshl_add_u32 v3, v4, 13, v3")
    a(f"s_lshl_b32 s{sT+2}, s3, 14\ns_lshl_b32 s{sT+3}, s6, 8\ns_add_u32 s{sT+2}, s{sT+2}, s{sT+3}\ns_add_u32 s{sT+2}, s{sT+2}, {WS_STATS}\ns_add_u32 s{sT+3}, s{sT+2}, 4096")
    a(f"v_and_b32 v5, 31, v0\nv_lshlrev_b32 v5, 4, v5\nv_lshl_add_u32 v6, v4, 11, v5")
    a(f"s_lshl_b32 s{sT+4}, s3, 7\ns_lshl_b32 s{sT+5}, s4, 3\ns_add_u32 s{sT+4}, s{sT+4}, s{sT+5}\ns_lshl_b32 s{sT+5}, s6, 1\ns_add_u32 s{sT+4}, s{sT+4}, s{sT+5}\ns_lshl_b32 s{sT+5}, s{sT+4}, 11")
    a(f"s_mul_i32 s{sT}, s6, 7168\ns_add_u32 s{sT}, s{sT}, 28672\nv_add_u32 v7, s{sT}, v1")
    a("s_waitcnt vmcnt(20)\ns_barrier")
    for j in range(7):
        a(f"ds_read_b128 v[{Z+4*j}:{Z+4*j+3}], v7 offset:{1024*j}")
    for k in range(4):
        a(f"buffer_load_dwordx4 v[{GX+4*k}:{GX+4*k+3}], v6, s[{RX}:{RX+3}], s{sT+5} offen offset:{512*k}")
        a(f"buffer_load_dwordx4 v[{GW+4*k}:{GW+4*k+3}], v5, s[{RG}:{RG+3}], 0 offen offset:{512*k}")
    a("s_waitcnt vmcnt(24) lgkmcnt(0)\ns_barrier")
    a.ext(group())
    a("s_waitcnt vmcnt(4)\nv_mov_b32 v8, 0")
    for r in range(16):
        a(f"v_dot2c_f32_bf16 v8, v{GX+r}, v{GW+r}")
    a("s_nop 2")
    for n in (8, 4, 2, 1):
        a(f"v_add_f32_dpp v8, v8, v8 row_ror:{n} row_mask:0xf bank_mask:0xf")
    a("v_mov_b32 v9, v8\nv_permlane16_swap_b32 v8, v9\nv_add_f32 v8, v8, v9")
    a(f"v_mul_f32 v8, {f2u(-LOG2E)}, v8\nv_exp_f32 v8, v8\nv_add_f32 v8, 1.0, v8\nv_rcp_f32 v8, v8\nv_min_u32 v8, -2, v8")
    a(f"s_lshl_b32 s{sT+4}, s{sT+4}, 2\ns_add_u32 s{sT+4}, s{sT+4}, {WS_GATE}\nv_lshlrev_b32 v9, 2, v4")
    a(f"buffer_store_dword v8, v9, s[{RWS}:{RWS+3}], s{sT+4} offen sc1")
    a("s_barrier")
    a.ext(group())
    poll(a, [f"    buffer_load_dwordx2 v[{ST+2*k}:{ST+2*k+1}], v3, s[{RWS}:{RWS+3}], s{sT+2+k//4} offen offset:{1024*(k%4)} sc1" for k in range(8)],
         list(range(ST, ST + 16)), 8)
    stamp(a, 3)
    a("s_barrier")
    a.ext(group())
    for k in range(1, 8):
        a(f"v_add_f32 v{ST}, v{ST}, v{ST+2*k}\nv_add_f32 v{ST+1}, v{ST+1}, v{ST+2*k+1}")
    a(f"v_mov_b32 v{ST+2}, v{ST}\nv_mov_b32 v{ST+3}, v{ST+1}\nv_permlane32_swap_b32 v{ST}, v{ST+2}\nv_permlane32_swap_b32 v{ST+1}, v{ST+3}")
    a(f"v_add_f32 v{ST}, v{ST}, v{ST+2}\nv_add_f32 v{ST+1}, v{ST+1}, v{ST+3}")
    a(f"v_mul_f32 v{ST}, {f2u(1/1792)}, v{ST}\nv_mul_f32 v{ST+1}, {f2u(1/1792)}, v{ST+1}\nv_fma_f32 v{ST+1}, -v{ST}, v{ST}, v{ST+1}")
    a(f"v_max_f32 v{ST+1}, 0, v{ST+1}\nv_add_f32 v{ST+1}, {f2u(1e-5)}, v{ST+1}\nv_rsq_f32 v{ST+1}, v{ST+1}")
    a(f"v_mul_f32 v{ST}, v{ST}, v{ST+1}\nv_mov_b32 v{ST+2}, v{ST}\nv_mov_b32 v{ST+3}, v{ST+1}")
    a(f"v_permlane16_swap_b32 v{ST}, v{ST+2}\nv_permlane16_swap_b32 v{ST+1}, v{ST+3}")
    a(f"s_mul_i32 s{sT}, s{sT+6}, 7168\ns_add_u32 s{sT}, s{sT}, {WS_Z2}\ns_add_u32 s{sT+1}, s{sT}, 4096")
    for j in range(7):
        if j in (1, 4):
            a("s_barrier")
            a.ext(group())
        for r in range(4):
            z, s = Z + 4 * j + r, ST + 2 * (r // 2)
            a(f"v_lshlrev_b32 v8, 16, v{z}\nv_and_b32 v9, 0xffff0000, v{z}")
            a(f"v_fma_f32 v8, v8, v{s+1}, -v{s}\nv_fma_f32 v9, v9, v{s+1}, -v{s}\nv_cvt_pk_bf16_f32 v{z}, v8, v9")
        a(f"buffer_store_dwordx4 v[{Z+4*j}:{Z+4*j+3}], v2, s[{RWS}:{RWS+3}], s{sT+j//4} offen offset:{1024*(j%4)} sc1")
    a("s_barrier")
    a.ext(group())
    a(f"s_lshl_b32 s{sT}, s{sT+6}, 2\ns_add_u32 s{sT}, s{sT}, {WS_FZ}\ns_waitcnt vmcnt(4)")
    set_flag(a, sT, 8)
    stamp(a, 4)
    if OPT["pf2"]:
        a(f"s_lshl_b32 s{sT}, s2, 2\ns_add_u32 s{sT}, s{sT}, s6")
        touch(a, 11, 8, [(RSP, 0), (RWU, 0), (RWO, 512)], sT)
    for s in range(6, 10):
        a("s_barrier")
        a.ext(group())


SS, SE = 30720, 153600
ACC3, BF3, AF3, BS = 4, 60, 76, 132
vBl, vAl, vB, vA = 140, 141, 142, 144


def acc3(j, t):
    return ACC3 + (j * 2 + t) * 4


def p3_aread(n):
    r, o = AF3 + 4 * n, 1024 * n
    return [f"    ds_read_b64_tr_b16 v[{r}:{r+1}], v{vA} offset:{o}", f"    ds_read_b64_tr_b16 v[{r+2}:{r+3}], v{vA+1} offset:{o}"]


def p3_bread(par):
    return [f"    ds_read_b128 v[{BF3+8*par+4*t}:{BF3+8*par+4*t+3}], v{vB} offset:{2048*t}" for t in range(2)]


def p3_head():
    return p3_bread(0) + p3_aread(0) + p3_aread(1) + p3_aread(2) + p3_aread(3)


def p3_stage():
    mf = [m16(acc3(n % 7, t), AF3 + 4 * n, BF3 + 8 * (n // 7) + 4 * t) for n in range(14) for t in range(2)]
    fill = {}
    q = p3_aread(4) + p3_aread(5) + [f"    v_xor_b32 v{vB}, 64, v{vB}"] + p3_aread(6) + p3_bread(1)
    for n in range(7, 14):
        q += p3_aread(n)
    for k in range(15):
        fill[k] = q[(len(q) * k) // 15:(len(q) * (k + 1)) // 15]
    fill[18] = ring_next(sRW, SS, 0, SE)
    fill[19] = [f"    v_add_u32 v{vB}, s{sRW}, v{vBl}", f"    v_add_u32 v{vA}, s{sRW}, v{vAl}", f"    v_xor_b32 v{vA+1}, 8, v{vA}",
                "    s_waitcnt lgkmcnt(0)", "    s_barrier"]
    h = p3_head()
    fill[20], fill[21] = h[0:2], h[2:4]
    for k in range(6):
        fill[22 + k] = [h[4 + k]]
    return weave(mf, fill)


def own_flag(a, base):
    a(f"s_lshl_b32 s{sT}, s3, 4\ns_add_u32 s{sT}, s{sT}, s4\ns_lshl_b32 s{sT}, s{sT}, 2\ns_add_u32 s{sT}, s{sT}, s5\ns_lshl_b32 s{sT}, s{sT}, 2")
    a(f"s_add_u32 s{sT}, s{sT}, {base}\ns_waitcnt vmcnt(0)")
    set_flag(a, sT, 2)


def p3_consumer(a):
    rows_read_lane(a, vBl, 2)
    a(f"s_lshl_b32 s{sT+2}, s5, 12\nv_add_u32 v{vBl}, s{sT+2}, v{vBl}")
    a("v_lshrrev_b32 v2, 4, v0\nv_and_b32 v3, 3, v0\nv_lshlrev_b32 v3, 2, v3\nv_lshl_add_u32 v3, v2, 4, v3\nv_bfe_u32 v1, v0, 2, 2\nv_add_u32 v3, v3, v1")
    a(f"v_lshlrev_b32 v3, 4, v3\nv_and_b32 v2, 1, v2\nv_lshl_add_u32 v3, v2, 3, v3\nv_add_u32 v{vAl}, 16384, v3")
    a(f"v_mov_b32 v{vB}, v{vBl}\nv_mov_b32 v{vA}, v{vAl}\nv_xor_b32 v{vA+1}, 8, v{vAl}\ns_mov_b32 s{sRW}, 0\ns_mov_b32 s{sCNT}, 4\ns_mov_b32 s{sPH}, 0")
    pre = p3_head()
    a.ext(pre)
    tok32(a, 3, 2)
    a(f"v_lshlrev_b32 v2, 1, v3\nv_xor_b32 v3, 8, v2\ns_lshl_b32 s{sT}, s3, 2\ns_add_u32 s{sT}, s{sT}, s5\ns_lshl_b32 s{sT}, s{sT}, 6")
    a(f"buffer_load_ushort v{BS}, v2, s[{RB}:{RB+3}], s{sT} offen\nbuffer_load_ushort v{BS+1}, v3, s[{RB}:{RB+3}], s{sT} offen")
    for r in range(56):
        a(f"v_mov_b32 v{ACC3+r}, 0")
    stamp(a, 6)
    a(".p2align 6\nF_c3:")
    a.ext(add_lgkm(pre, p3_stage()))
    a(f"s_sub_u32 s{sCNT}, s{sCNT}, 1\ns_cmp_lg_u32 s{sCNT}, 0\ns_cbranch_scc1 F_c3")
    a(f"s_cmp_lg_u32 s{sPH}, 0\ns_cbranch_scc1 F_e3\ns_mov_b32 s{sPH}, 1\ns_mov_b32 s{sCNT}, 28")
    own_flag(a, WS_FO)
    a("s_branch F_c3\nF_e3:\ns_waitcnt lgkmcnt(0)")
    stamp(a, 7)
    a(f"v_lshlrev_b32 v{BS}, 16, v{BS}\nv_lshlrev_b32 v{BS+1}, 16, v{BS+1}\nv_lshlrev_b32 v1, 4, v0")
    a(f"s_mul_i32 s{sT}, s4, 7\ns_add_u32 s{sT}, s{sT}, 1\ns_lshr_b32 s{sT}, s{sT}, 1\ns_lshr_b32 s{sT+1}, s4, 1\ns_mul_i32 s{sT+1}, s{sT+1}, 7\ns_add_u32 s{sT+1}, s{sT+1}, 3")
    a(f"s_mul_i32 s{sT+2}, s3, 88\ns_add_u32 s{sT+2}, s{sT+2}, 32\ns_lshl_b32 s{sT+3}, s5, 11\ns_add_u32 s{sT+3}, s{sT+3}, {WS_ACT}")
    for k in range(2):
        a(f"s_add_u32 s{sT+k}, s{sT+k}, s{sT+2}\ns_lshl_b32 s{sT+k}, s{sT+k}, 13\ns_add_u32 s{sT+k}, s{sT+k}, s{sT+3}")
    a(f"s_and_b32 s{sT+2}, s4, 1\ns_lshl_b32 s{sT+2}, s{sT+2}, 3\ns_add_u32 s{sT+1}, s{sT+1}, s{sT+2}")
    PK = 164
    for j in range(7):
        for t in range(2):
            x = acc3(j, t)
            pk = PK + 8 * (j // 2) + 4 * t + 2 * (j % 2)
            for h in range(2):
                z = Z1 + 4 * j + 2 * t + h
                a(f"v_add_f32 v{x+2*h}, v{x+2*h}, v{BS+t}\nv_add_f32 v{x+2*h+1}, v{x+2*h+1}, v{BS+t}")
                a(f"v_lshlrev_b32 v2, 16, v{z}\nv_and_b32 v3, 0xffff0000, v{z}")
                a(f"v_mul_f32 v2, v2, v{x+2*h}\nv_mul_f32 v3, v3, v{x+2*h+1}\nv_cvt_pk_bf16_f32 v{pk+h}, v2, v3")
        if j % 2 == 1:
            for t in range(2):
                pk = PK + 8 * (j // 2) + 4 * t
                a(f"buffer_store_dwordx4 v[{pk}:{pk+3}], v1, s[{RWS}:{RWS+3}], s{sT} offen offset:{1024*t} sc1")
            a(f"s_add_u32 s{sT}, s{sT}, 8192")
    for t in range(2):
        pk = PK + 24 + 4 * t
        a(f"buffer_store_dwordx2 v[{pk}:{pk+1}], v1, s[{RWS}:{RWS+3}], s{sT+1} offen offset:{1024*t} sc1")


ACC4, SAV, BF4, AF4, GT = 4, 36, 68, 84, 116


def acc4(j, t):
    return ACC4 + (j * 2 + t) * 4


def p4_aread(n):
    r, o = AF4 + 4 * n, 4096 * (n // 4)
    return [f"    ds_read_b64_tr_b16 v[{r}:{r+1}], v{vA+n%4} offset:{o}", f"    ds_read_b64_tr_b16 v[{r+2}:{r+3}], v{vA+n%4} offset:{o+2048}"]


def p4_bread(par):
    return [f"    ds_read_b128 v[{BF4+8*par+4*t}:{BF4+8*par+4*t+3}], v{vB} offset:{8192*par+1024*t}" for t in range(2)]


def p4_head():
    return p4_bread(0) + p4_aread(0) + p4_aread(1) + p4_aread(2) + p4_aread(3)


def p4_stage():
    mf = [m16(acc4(n % 4, t), AF4 + 4 * n, BF4 + 8 * (n // 4) + 4 * t) for n in range(8) for t in range(2)]
    fill = {}
    q = p4_bread(1) + p4_aread(4) + p4_aread(5) + p4_aread(6) + p4_aread(7)
    for k in range(5):
        fill[k] = q[2 * k:2 * k + 2]
    fill[5] = ring_next(sRW, SS, 0, SE)
    fill[6] = [f"    v_add_u32 v{vB}, s{sRW}, v{vBl}", f"    v_add_u32 v{vA}, s{sRW}, v{vAl}"]
    fill[7] = [f"    v_xor_b32 v{vA+k}, {32*k}, v{vA}" for k in (1, 2)]
    fill[8] = [f"    v_xor_b32 v{vA+3}, 96, v{vA}"]
    fill[9] = ["    s_waitcnt lgkmcnt(0)", "    s_barrier"]
    h = p4_head()
    for k in range(5):
        fill[10 + k] = h[2 * k:2 * k + 2]
    return weave(mf, fill)


UFLAG_AT = 3


def p4_consumer(a):
    a(f"s_lshl_b32 s{sT+2}, s5, 11\ns_add_u32 s{sT+2}, s{sT+2}, 8192\nv_lshlrev_b32 v2, 4, v0\nv_add_u32 v{vBl}, s{sT+2}, v2")
    a(f"v_lshrrev_b32 v2, 2, v0\nv_bfe_u32 v3, v2, 1, 2\nv_lshlrev_b32 v3, 5, v3\nv_lshl_add_u32 v3, v2, 7, v3\nv_and_b32 v2, 3, v0\nv_lshl_add_u32 v{vAl}, v2, 3, v3")
    a(f"v_add_u32 v{vB}, s{sRW}, v{vBl}\nv_add_u32 v{vA}, s{sRW}, v{vAl}")
    for k in (1, 2, 3):
        a(f"v_xor_b32 v{vA+k}, {32*k}, v{vA}")
    pre = p4_head()
    a.ext(pre)
    a(f"s_mov_b32 s{sCNT}, {UFLAG_AT}\ns_mov_b32 s{sPH}, 0")
    for r in range(32):
        a(f"v_mov_b32 v{ACC4+r}, 0")
    stamp(a, 8)
    a(".p2align 6\nF_c4:")
    a.ext(add_lgkm(pre, p4_stage()))
    a(f"s_sub_u32 s{sCNT}, s{sCNT}, 1\ns_cmp_lg_u32 s{sCNT}, 0\ns_cbranch_scc1 F_c4")
    a(f"s_cmp_eq_u32 s{sPH}, 2\ns_cbranch_scc1 F_e4\ns_cmp_eq_u32 s{sPH}, 1\ns_cbranch_scc1 F_m4\ns_mov_b32 s{sPH}, 1\ns_mov_b32 s{sCNT}, {16-UFLAG_AT}")
    own_flag(a, WS_FU)
    a(f"s_branch F_c4\nF_m4:\ns_mov_b32 s{sPH}, 2\ns_mov_b32 s{sCNT}, 28")
    tok32(a, 1, 2)
    a(f"v_lshlrev_b32 v{GT+4}, 2, v1\nv_xor_b32 v{GT+5}, 16, v{GT+4}\ns_lshl_b32 s{sT}, s{sRB4}, 2\ns_add_u32 s{sT}, s{sT}, s5\ns_lshl_b32 s{sT+1}, s{sT}, 7\ns_add_u32 s{sT+1}, s{sT+1}, {WS_GATE}")
    gl = [f"    buffer_load_dword v{GT+k}, v{GT+4+k}, s[{RWS}:{RWS+3}], s{sT+1} offen sc1" for k in range(2)]
    a.ext(gl)
    for r in range(32):
        a(f"v_mov_b32 v{SAV+r}, v{ACC4+r}")
    for r in range(32):
        a(f"v_mov_b32 v{ACC4+r}, 0")
    a("s_branch F_c4\nF_e4:\ns_waitcnt vmcnt(0) lgkmcnt(0)")
    stamp(a, 9)
    check_ready(a, [GT, GT + 1], 2)
    a("s_cbranch_vccz F_g4")
    poll(a, gl, [GT, GT + 1], 2)
    a("F_g4:")
    a(f"v_sub_f32 v{GT+2}, 1.0, v{GT}\nv_sub_f32 v{GT+3}, 1.0, v{GT+1}")
    a("v_lshlrev_b32 v1, 11, v1\nv_bfe_u32 v2, v0, 4, 1\nv_lshl_add_u32 v1, v2, 5, v1\nv_lshrrev_b32 v2, 5, v0\nv_lshl_add_u32 v1, v2, 4, v1\nv_xor_b32 v2, 8192, v1")
    a(f"s_lshl_b32 s{sT}, s{sT}, 16\ns_lshl_b32 s{sT+1}, s{sNB}, 7\ns_add_u32 s{sT}, s{sT}, s{sT+1}")
    PK = BF4
    for t in range(2):
        for j in range(4):
            x = acc4(j, t)
            for r in range(4):
                a(f"v_mul_f32 v{x+r}, v{x+r}, v{GT+2+t}\nv_fmac_f32 v{x+r}, v{x+r+SAV-ACC4}, v{GT+t}")
            pk = PK + 8 * t + 2 * j
            a(f"v_cvt_pk_bf16_f32 v{pk}, v{x}, v{x+1}\nv_cvt_pk_bf16_f32 v{pk+1}, v{x+2}, v{x+3}")
        for pi in range(2):
            pk = PK + 8 * t + 4 * pi
            a(f"v_permlane16_swap_b32 v{pk}, v{pk+2}\nv_permlane16_swap_b32 v{pk+1}, v{pk+3}")
            a(f"buffer_store_dwordx4 v[{pk}:{pk+3}], v{1+t}, s[{ROUT}:{ROUT+3}], s{sT} offen offset:{64*pi}")


def p34_producer(a, p):
    VO = 12
    kind, half = p >> 1, p & 1
    n3 = 8 - kind
    n4 = 8 if p < 3 else 0
    a("v_lshlrev_b32 v2, 2, v0")
    if kind == 0:
        rows_dma_voffs(a, VO, 4096, 4)
        a(f"s_lshl_b32 s{sKX}, s3, 19\ns_add_u32 s{sKX}, s{sKX}, {half << 18}")
        a("s_waitcnt vmcnt(0)")
    else:
        a(f"s_mul_i32 s{sKX}, s4, {64*7168}\ns_add_u32 s{sKX}, s{sKX}, {WS_Z2+7168*half}\ns_lshl_b32 s{sT}, s4, 8\ns_add_u32 s{sT}, s{sT}, {WS_FZ}")
        poll(a, [f"    buffer_load_dword v4, v2, s[{RWS}:{RWS+3}], s{sT} offen sc1"], [4], 3)
    stamp(a, 5)
    a(f"s_mov_b32 s{sWW}, 0")

    def g3():
        o = []
        if kind == 0:
            o += [f"    s_add_u32 s{sT}, s{sKX}, {32*4096}"]
            for i in range(8):
                o += dma(VO + (i & 3), RSP, sKX if i < 4 else sT, f"s_add_u32 m0, s{sWW}, {8192*half+1024*i}")
            o += [f"    s_add_u32 s{sKX}, s{sKX}, 128"]
        else:
            o += [f"    s_add_u32 s{sT}, s{sKX}, 4096"]
            for i in range(7):
                if i % 4 == 0:
                    o += [f"    s_add_u32 m0, s{sWW}, {16384+7168*half+1024*i}"]
                o += [f"    buffer_load_dwordx4 v1, s[{RWS}:{RWS+3}], s{sKX if i < 4 else sT} offen offset:{1024*(i%4)} sc1 lds"]
            o += [f"    s_add_u32 s{sKX}, s{sKX}, 14336"]
        return o + ring_next(sWW, SS, 0, SE)

    def g4(rs):
        o = []
        if p == 0:
            for i in range(8):
                o += dma(VO + 4, rs, sKW, f"s_add_u32 m0, s{sWW}, {1024*i}") + [f"    s_add_u32 s{sKW}, s{sKW}, 16384"]
        elif p < 3:
            o += [f"    s_add_u32 s{sT}, s{sKW}, 4096"]
            for i in range(8):
                if i % 4 == 0:
                    o += [f"    s_add_u32 m0, s{sWW}, {8192*p+1024*i}"]
                o += [f"    buffer_load_dwordx4 v1, s[{RWS}:{RWS+3}], s{sKW if i < 4 else sT} offen offset:{1024*(i%4)} sc1 lds"]
            o += [f"    s_add_u32 s{sKW}, s{sKW}, 16384"]
        else:
            return []
        return o + ring_next(sWW, SS, 0, SE)

    def loop(tag, cnt, allow, g):
        a(f"s_mov_b32 s{sCNT}, {cnt}\nF_{tag}{p}:\ns_waitcnt vmcnt({allow})\ns_barrier")
        a.ext(g)
        a(f"s_sub_u32 s{sCNT}, s{sCNT}, 1\ns_cmp_lg_u32 s{sCNT}, 0\ns_cbranch_scc1 F_{tag}{p}")

    a("s_barrier")
    a.ext(g3() + g3())
    a("s_barrier")
    a.ext(g3())
    a("s_barrier\ns_barrier")
    a.ext(g3())
    a(f"s_barrier\ns_waitcnt vmcnt({3*n3})\ns_barrier")
    a.ext(g3())
    if p == 0:
        a("v_lshrrev_b32 v4, 3, v0\nv_lshlrev_b32 v4, 11, v4\nv_bfe_u32 v5, v0, 1, 2\nv_lshrrev_b32 v6, 4, v0\nv_xor_b32 v5, v5, v6\nv_lshl_add_u32 v4, v5, 5, v4")
        a(f"v_and_b32 v5, 1, v0\nv_lshl_add_u32 v4, v5, 4, v4\ns_lshl_b32 s{sT}, s{sNB}, 7\nv_add_u32 v{VO+4}, s{sT}, v4\ns_mov_b32 s{sKW}, 0")
    elif p < 3:
        a(f"s_mul_i32 s{sKW}, s{sRB4}, {88*8192}\ns_add_u32 s{sKW}, s{sKW}, {WS_ACT+8192*(p-1)}")
    a(f"s_lshl_b32 s{sWX}, s{sRB4}, 8\ns_add_u32 s{sWX}, s{sWX}, {WS_FU if p == 3 else WS_FO}")
    fl = [f"    buffer_load_dword v4, v2, s[{RWS}:{RWS+3}], s{sWX} offen sc1"]
    if p in (1, 2):
        loop("ra", 22, 3 * n3, g3())
        a.ext(fl)
        loop("rb", 5, 3 * n3, g3())
        check_ready(a, [4], 3)
        a(f"s_cbranch_vccz F_ok{p}")
        poll(a, fl, [4], 3)
        a(f"F_ok{p}:")
    else:
        loop("ra", 27, 3 * n3, g3())
    size = lambda s: n3 if s < 32 else n4
    for s in range(27, 30):
        a(f"s_waitcnt vmcnt({size(s+2)+size(s+3)+size(s+4)})\ns_barrier")
        a.ext(g4(RWO))
    if p < 3:
        loop("rc", 13, 3 * n4, g4(RWO))
        if p == 0:
            a(f"s_mov_b32 s{sKW}, 0")
        loop("rd", 28, 3 * n4, g4(RWU))
        for s in range(71, 76):
            a(f"s_waitcnt vmcnt({n4*max(74-s, 0)})\ns_barrier")
    else:
        loop("rc", 10, 0, [])
        a.ext(fl)
        a("s_barrier\ns_barrier\ns_barrier\ns_waitcnt vmcnt(0)")
        check_ready(a, [4], 3)
        a(f"s_cbranch_vccz F_ok{p}")
        poll(a, fl, [4], 3)
        a(f"F_ok{p}:")
        stamp(a, 6)


def kernel(name):
    a = Asm()
    a.ext(kernel_head(name))
    a("s_cmp_ge_u32 s2, 256\ns_cbranch_scc1 F_exit")
    a(f"s_load_dwordx8 s[56:63], s[0:1], 0\ns_load_dwordx2 s[64:65], s[0:1], {KA['wo']}\ns_load_dwordx16 s[68:83], s[0:1], {KA['win']}")
    a("v_lshrrev_b32 v1, 6, v0\nv_and_b32 v0, 63, v0\nv_readfirstlane_b32 s5, v1")
    a("s_and_b32 s3, s2, 1\ns_lshl_b32 s3, s3, 3\ns_lshr_b32 s6, s2, 5\ns_add_u32 s3, s3, s6")
    a("s_bfe_u32 s4, s2, 0x20001\ns_lshl_b32 s4, s4, 2\ns_bfe_u32 s6, s2, 0x20003\ns_add_u32 s4, s4, s6")
    a("s_waitcnt lgkmcnt(0)")
    a("s_bitcmp1_b32 s4, 1\ns_cselect_b32 s60, s62, s60\ns_cselect_b32 s61, s63, s61")
    srd(a, RX, 56, 2048 * 1024 * 2)
    srd(a, RQ, 58, 1024 * 1024 * 2)
    srd(a, RW, 68, 1024 * 3584 * 2)
    srd(a, RKV, 60, 1024 * 32 * 2)
    srd(a, RWS, 82, WS_SIZE)
    srd(a, RSP, 70, 2048 * 2048 * 2)
    srd(a, RB, 72, 4096)
    srd(a, RG, 76, 2048)
    srd(a, RWO, 64, 1024 * 1024 * 2)
    srd(a, RWU, 74, 1792 * 1024 * 2)
    srd(a, ROUT, 78, 2048 * 1024 * 2)
    srd(a, RDBG, 80, 256)
    a(f"s_and_b32 s{sRB4}, s2, 3\ns_lshl_b32 s{sRB4}, s{sRB4}, 2\ns_lshr_b32 s6, s2, 6\ns_add_u32 s{sRB4}, s{sRB4}, s6")
    a(f"s_bfe_u32 s{sNB}, s2, 0x10002\ns_lshl_b32 s{sNB}, s{sNB}, 3\ns_bfe_u32 s6, s2, 0x30003\ns_add_u32 s{sNB}, s{sNB}, s6")
    if STAMP:
        for k in range(22):
            a(f"s_mov_b32 s{sSTAMP+k}, 0")
    stamp(a, 0)
    for p in range(4):
        a(f"s_cmp_eq_u32 s5, {4+p}\ns_cbranch_scc1 F_prod{p}")
    p1_consumer(a)
    p2_consumer(a)
    p3_consumer(a)
    p4_consumer(a)
    a("s_branch F_end")
    p2_slow(a)
    for p in range(4):
        a(f"F_prod{p}:")
        p1_producer(a, p)
        if p < 3:
            a("s_branch F_prod2x")
    a("F_prod2x:")
    p2_producer(a)
    for p in range(1, 4):
        a(f"s_cmp_eq_u32 s6, {p}\ns_cbranch_scc1 F_prod3{p}")
    for p in range(4):
        a(f"F_prod3{p}:")
        p34_producer(a, p)
        a("s_branch F_end")
    a("F_end:")
    stamp_flush(a)
    a("F_exit:\ns_endpgm")
    return fix_hazards(a.L)


def build():
    ref = open(f"cdna_kernels/{NAME}.s.ref").read().split("\n")
    hdr = [l for l in ref if l.startswith(";") and "@launch" not in l]
    n = f"{NAME}_kernel"
    out = hdr + [f"; @launch grid=(256,1,1) block=(512,1,1) lds={LDS}", '.amdgcn_target "amdgcn-amd-amdhsa--gfx950"', ".text"]
    out += kernel(n) + ['.section .rodata,"a"', ".p2align 6"] + kernel_desc(n)
    return "\n".join(out) + "\n"


if __name__ == "__main__":
    open(sys.argv[1], "w").write(build())
```
